```python
import torch

def _softmax(x, axis=-1):
    return torch.softmax(x, dim=axis)
def _gelu(x):
    return torch.nn.functional.gelu(x, approximate="tanh")
def _silu(x):
    return torch.nn.functional.silu(x)
def _sigmoid(x):
    return torch.sigmoid(x)
def _layernorm(x, axis=-1, eps=1e-5):
    m = x.mean(dim=axis, keepdim=True)
    v = x.var(dim=axis, keepdim=True, unbiased=False)
    return (x - m) / torch.sqrt(v + eps)
def _scatter_add(tgt, idx, src, axis=0):
    return tgt.clone().index_add_(axis, idx, src)
def _segment_sum(src, seg, n):
    out = torch.zeros((n,) + src.shape[1:], dtype=src.dtype)
    return out.index_add_(0, seg, src)
def _pad(x, pw):
    flat = tuple(v for pair in reversed(pw) for v in pair)
    return torch.nn.functional.pad(x, flat)

kernel_name = 'sequential_preLN__grouped_kv_mqa__dense_activation_relu__prompt'

def setup_inputs():

    _w = (lambda a: (lambda t: t.to(torch.bfloat16) if t.is_floating_point() else t)(torch.as_tensor(a)))
    def _A_setup():
        B, S, D, H = 1, 2048, 640, 32
        Dh = D // H
        return {
            "x": _w((lambda *s: torch.randn(*s, dtype=torch.bfloat16) * 0.05)(B, S, D)),
            "wq": _w((lambda *s: torch.randn(*s, dtype=torch.bfloat16) * 0.05)(D, H * Dh)),
            "wk": _w((lambda *s: torch.randn(*s, dtype=torch.bfloat16) * 0.05)(D, Dh)),
            "wv": _w((lambda *s: torch.randn(*s, dtype=torch.bfloat16) * 0.05)(D, Dh)),
            "wo": _w((lambda *s: torch.randn(*s, dtype=torch.bfloat16) * 0.05)(H * Dh, D)),
        }
    _A_in = _A_setup()

    def _B_setup():
        B, S, D, Dff = 1, 2048, 640, 1536
        return {
            "x": _w((lambda *s: torch.randn(*s, dtype=torch.bfloat16) * 0.05)(B, S, D)),
            "w1": _w((lambda *s: torch.randn(*s, dtype=torch.bfloat16) * 0.05)(D, Dff)),
            "w2": _w((lambda *s: torch.randn(*s, dtype=torch.bfloat16) * 0.05)(Dff, D)),
        }
    _B_in = _B_setup()

    return {
        "A_x": _A_in["x"],
        "A_wq": _A_in["wq"],
        "A_wk": _A_in["wk"],
        "A_wv": _A_in["wv"],
        "A_wo": _A_in["wo"],
        "B_x": _B_in["x"],
        "B_w1": _B_in["w1"],
        "B_w2": _B_in["w2"],
    }

def reference(A_x, A_wq, A_wk, A_wv, A_wo, B_x, B_w1, B_w2):
    def _A_ref(x, wq, wk, wv, wo):
        B, S, D = x.shape
        H = 32
        Dh = D // H
        q = (lambda x, *d: x.permute(*d))((x @ wq).reshape(B, S, H, Dh), 0, 2, 1, 3)
        k = x @ wk
        v = x @ wv
        scores = torch.einsum("bhqd,bkd->bhqk", q, k) * (Dh ** -0.5)
        p = _softmax(scores, axis=-1)
        o = torch.einsum("bhqk,bkd->bhqd", p, v)
        return (lambda x, *d: x.permute(*d))(o, 0, 2, 1, 3).reshape(B, S, H * Dh) @ wo

    def _B_ref(x, w1, w2):
        h = torch.einsum("bsd,df->bsf", x, w1)
        zero = torch.zeros_like(h)
        h = torch.maximum(h, zero)
        return torch.einsum("bsf,fd->bsd", h, w2)

    x = A_x
    h = x + _A_ref(_layernorm(x, axis=-1), A_wq, A_wk, A_wv, A_wo)
    h2 = h + _B_ref(_layernorm(h, axis=-1), B_w1, B_w2)
    return h2
```

```python
import sys, os, subprocess, struct, ctypes, time
import numpy as np
sys.path.insert(0, "cdna_kernels")
from cdna_launch import AsmKernel, DeviceBuffer, with_harness_metadata, pack_ptr_kernargs, _hip, _check

def build(asm, name, nptr, out="mb.co"):
    full = with_harness_metadata(asm, name, nptr)
    open("mb.s","w").write(full)
    r = subprocess.run(["clang","-x","assembler","-target","amdgcn-amd-amdhsa","-mcpu=gfx950","mb.s","-o",out],capture_output=True,text=True)
    if r.returncode:
        print("ASM FAIL", r.stderr[:3000]); sys.exit(1)

def gen(waves, vgpr, spin, wr_kb):
    s = f"""; @launch grid=(256,1,1) block=({waves*64},1,1) lds=0
.amdgcn_target "amdgcn-amd-amdhsa--gfx950"
.text
.globl mb_kernel
.p2align 8
.type mb_kernel,@function
mb_kernel:
    s_memrealtime s[42:43]
    s_load_dwordx2 s[4:5], s[0:1], 0
    s_load_dwordx2 s[6:7], s[0:1], 8
    s_waitcnt lgkmcnt(0)
    s_mov_b32 s8, s4
    s_mov_b32 s9, s5
    s_mov_b32 s10, {256*waves*16}
    s_mov_b32 s11, 0x20000
    s_mov_b32 s12, s6
    s_mov_b32 s13, s7
    s_mov_b32 s14, {64<<20}
    s_mov_b32 s15, 0x20000
    v_lshrrev_b32 v1, 6, v0
    s_mov_b32 s16, {spin}
L_spin:
    v_mov_b32 v5, v1
    v_mov_b32 v6, v1
    v_mov_b32 v7, v1
    v_mov_b32 v4, v1
    s_sub_u32 s16, s16, 1
    s_cmp_lg_u32 s16, 0
    s_cbranch_scc1 L_spin
    s_mul_i32 s3, s2, {waves}
    v_add_u32 v2, s3, v1
    v_and_b32 v3, 63, v0
    v_lshlrev_b32 v3, 4, v3
    v_mul_u32_u24 v12, {max(wr_kb,1)*1024}, v2
    v_add_u32 v3, v3, v12
"""
    for i in range(wr_kb):
        s += f"    s_mov_b32 s18, {i*1024}\n    buffer_store_dwordx4 v[4:7], v3, s[12:15], s18 offen\n"
    s += f"""
    s_waitcnt vmcnt(0)
    s_memrealtime s[44:45]
    s_waitcnt lgkmcnt(0)
    v_mov_b32 v8, s42
    v_mov_b32 v9, s44
    s_getreg_b32 s20, hwreg(HW_REG_XCC_ID)
    v_mov_b32 v10, s20
    s_getreg_b32 s20, hwreg(HW_REG_HW_ID)
    v_mov_b32 v11, s20
    v_lshlrev_b32 v2, 4, v2
    s_mov_b64 exec, 1
    buffer_store_dwordx4 v[8:11], v2, s[8:11], 0 offen
    s_endpgm
.section .rodata,"a"
.p2align 6
.amdhsa_kernel mb_kernel
  .amdhsa_next_free_vgpr {vgpr}
  .amdhsa_next_free_sgpr 102
  .amdhsa_accum_offset {min(vgpr,256)}
  .amdhsa_group_segment_fixed_size 0
  .amdhsa_kernarg_size 16
  .amdhsa_user_sgpr_count 2
  .amdhsa_user_sgpr_kernarg_segment_ptr 1
  .amdhsa_system_sgpr_workgroup_id_x 1
.end_amdhsa_kernel
"""
    return s

GPU = os.path.exists('/dev/kfd')
build(gen(4,32,200000,0), "mb_kernel", 2, "long.co")
if GPU:
    inp = DeviceBuffer(64<<20)
    longk = AsmKernel("long.co","mb_kernel")
    lout = DeviceBuffer(256*16*16)
def run(waves, vgpr, spin, wr_kb, lds, pre=True):
    build(gen(waves,vgpr,spin,wr_kb), "mb_kernel", 2)
    if not GPU: return
    k = AsmKernel("mb.co","mb_kernel")
    N=6
    outs = [DeviceBuffer(256*waves*16) for _ in range(N)]
    res=[]
    e0=ctypes.c_void_p(); e1=ctypes.c_void_p()
    _check(_hip.hipEventCreate(ctypes.byref(e0))); _check(_hip.hipEventCreate(ctypes.byref(e1)))
    for rep in range(7):
        if pre: longk.launch((256,1,1),(256,1,1),pack_ptr_kernargs([lout.ptr, inp.ptr]),0)
        _check(_hip.hipEventRecord(e0,None))
        for i in range(N):
            k.launch((256,1,1),(waves*64,1,1),pack_ptr_kernargs([outs[i].ptr, inp.ptr]),lds)
        _check(_hip.hipEventRecord(e1,None))
        _check(_hip.hipDeviceSynchronize())
        ms=ctypes.c_float(); _check(_hip.hipEventElapsedTime(ctypes.byref(ms),e0,e1))
        o=[x.to_numpy(np.uint32,(256*waves,4)).astype(np.int64) for x in outs]
        st=[x[:,0].min() for x in o]; stx=[x[:,0].max() for x in o]; en=[x[:,1].max() for x in o]; enm=[x[:,1].min() for x in o]
        gaps=[(st[i+1]-en[i])*10 for i in range(N-1)]
        skew=[(stx[i]-st[i])*10 for i in range(N)]
        dur=[(en[i]-st[i])*10 for i in range(N)]
        per=[(st[i+1]-st[i])*10 for i in range(N-1)]
        res.append([np.median(gaps),np.median(skew),np.median(dur),np.median(per), ms.value*1e6, (en[-1]-st[0])*10])
    r=np.median(np.array(res),axis=0)
    print(f"waves={waves} vgpr={vgpr} spin={spin} wrKB/wave={wr_kb} lds={lds} pre={pre}: gap={r[0]:.0f}ns skew={r[1]:.0f} dur={r[2]:.0f} period={r[3]:.0f} evt_total={r[4]:.0f} span={r[5]:.0f}")
    if waves==8 and lds==0 and spin==1 and wr_kb==0 and pre:
        x=o[3]
        xcc=x[::waves,2]&0xf
        print("xcc of first 24 WGs", xcc[:24])
        t0=x[:,0].min()
        for xc in range(8):
            m=np.repeat(xcc==xc,waves)
            print(xc, "start range", (x[m,0].min()-t0)*10, (x[m,0].max()-t0)*10)
    k.unload()
if __name__=="__main__": run(8,256,1,0,0)
if __name__=="__main__": run(8,256,1,0,0,pre=False)
if __name__=="__main__": run(4,256,1,0,0)
if __name__=="__main__": run(4,512,1,0,0)
if __name__=="__main__": run(4,64,1,0,0)
if __name__=="__main__": run(1,64,1,0,0)
if __name__=="__main__": run(8,256,1,0,65536)
if __name__=="__main__": run(8,256,1,0,163840)
if __name__=="__main__": run(4,256,1,0,163840)
if __name__=="__main__": run(8,256,100,0,0)
if __name__=="__main__": run(8,256,100,2,0)
if __name__=="__main__": run(8,256,100,8,0)
if __name__=="__main__": run(16,128,1,0,0)
```

```python
import sys, os, ctypes
import numpy as np
sys.path.insert(0, "cdna_kernels")
from cdna_launch import AsmKernel, DeviceBuffer, pack_ptr_kernargs, _hip, _check
from gap1 import build
def gen(waves, n, lds):
    s = f"""; @launch grid=(256,1,1) block=({waves*64},1,1) lds=0
.amdgcn_target "amdgcn-amd-amdhsa--gfx950"
.text
.globl mb_kernel
.p2align 8
.type mb_kernel,@function
mb_kernel:
    s_load_dwordx2 s[4:5], s[0:1], 0
    s_load_dwordx2 s[6:7], s[0:1], 8
    s_waitcnt lgkmcnt(0)
    s_mov_b32 s8, s4
    s_mov_b32 s9, s5
    s_mov_b32 s10, {256*waves*256}
    s_mov_b32 s11, 0x20000
    s_mov_b32 s12, s6
    s_mov_b32 s13, s7
    s_mov_b32 s14, {1<<24}
    s_mov_b32 s15, 0x20000
    v_lshrrev_b32 v1, 6, v0
    v_and_b32 v2, 63, v0
    v_lshlrev_b32 v2, 4, v2
    v_mul_u32_u24 v3, {n*1024}, v1
    v_add_u32 v2, v2, v3
    s_mov_b32 m0, 0
    s_barrier
    s_memtime s[20:21]
"""
    for i in range(n):
        s += f"    s_mov_b32 s18, {i*1024}\n"
        if lds: s += f"    buffer_load_dwordx4 v2, s[12:15], s18 offen lds\n"
        else: s += f"    buffer_load_dwordx4 v[{8+4*i}:{11+4*i}], v2, s[12:15], s18 offen\n"
        s += f"    s_memtime s[{22+2*i}:{23+2*i}]\n"
    s += "    s_waitcnt vmcnt(0) lgkmcnt(0)\n"
    for i in range(n): s += f"    s_sub_u32 s19, s{22+2*i}, s20\n    v_mov_b32 v{8+i}, s19\n"
    s += f"""
    s_mul_i32 s3, s2, {waves}
    v_add_u32 v2, s3, v1
    v_lshlrev_b32 v2, 8, v2
    s_mov_b64 exec, 1
"""
    for i in range(0,n,4): s += f"    buffer_store_dwordx4 v[{8+i}:{11+i}], v2, s[8:11], 0 offen offset:{i*4}\n"
    s += """    s_endpgm
.section .rodata,"a"
.p2align 6
.amdhsa_kernel mb_kernel
  .amdhsa_next_free_vgpr 256
  .amdhsa_next_free_sgpr 102
  .amdhsa_accum_offset 256
  .amdhsa_group_segment_fixed_size 0
  .amdhsa_kernarg_size 16
  .amdhsa_user_sgpr_count 2
  .amdhsa_user_sgpr_kernarg_segment_ptr 1
  .amdhsa_system_sgpr_workgroup_id_x 1
.end_amdhsa_kernel
"""
    return s
GPU = os.path.exists('/dev/kfd')
for waves in (1,4,8):
  for lds in (False,True):
    n=36
    build(gen(waves,n,lds),"mb_kernel",2)
    if not GPU: continue
    k = AsmKernel("mb.co","mb_kernel")
    out = DeviceBuffer(256*waves*256); inp=DeviceBuffer(1<<24)
    for rep in range(3):
        k.launch((256,1,1),(waves*64,1,1),pack_ptr_kernargs([out.ptr,inp.ptr]),4096)
        _check(_hip.hipDeviceSynchronize())
    o=out.to_numpy(np.uint32,(256,waves,64))
    print(f"waves={waves} lds={lds}")
    for w in sorted(set([0,waves-1])): print("  w",w, np.median(o[:,w,:n],axis=0).astype(int))
```

```python
import sys, os, subprocess, struct, ctypes
import numpy as np
sys.path.insert(0, "cdna_kernels")
from cdna_launch import AsmKernel, DeviceBuffer, with_harness_metadata, pack_ptr_kernargs, _hip, _check

TEMPLATE = """; @launch grid=({grid},1,1) block=({block},1,1) lds={lds}
.amdgcn_target "amdgcn-amd-amdhsa--gfx950"
.text
.globl mb_kernel
.p2align 8
.type mb_kernel,@function
mb_kernel:
    s_load_dwordx2 s[4:5], s[0:1], 0
    s_load_dwordx2 s[6:7], s[0:1], 8
    s_waitcnt lgkmcnt(0)
    s_mov_b32 s8, s4
    s_mov_b32 s9, s5
    s_mov_b32 s10, {outbytes}
    s_mov_b32 s11, 0x20000
    s_mov_b32 s12, s6
    s_mov_b32 s13, s7
    s_mov_b32 s14, {inbytes}
    s_mov_b32 s15, 0x20000
{init}
    s_barrier
    s_memtime s[20:21]
    s_memrealtime s[26:27]
    s_waitcnt lgkmcnt(0)
    s_mov_b32 s16, {iters}
L_loop:
{body}
    s_sub_u32 s16, s16, 1
    s_cmp_lg_u32 s16, 0
    s_cbranch_scc1 L_loop
    s_waitcnt vmcnt(0) lgkmcnt(0)
    s_nop 15
    s_memtime s[22:23]
    s_memrealtime s[28:29]
    s_waitcnt lgkmcnt(0)
    s_sub_u32 s24, s22, s20
    s_sub_u32 s25, s28, s26
    v_mov_b32 v1, s24
    v_writelane_b32 v1, s25, 1
    s_lshl_b32 s3, s2, {logblock}
    v_add_u32 v2, s3, v0
    v_lshlrev_b32 v2, 2, v2
    buffer_store_dword v1, v2, s[8:11], 0 offen
    s_waitcnt vmcnt(0)
    s_endpgm
.section .rodata,"a"
.p2align 6
.amdhsa_kernel mb_kernel
  .amdhsa_next_free_vgpr {vgpr}
  .amdhsa_next_free_sgpr 102
  .amdhsa_accum_offset {accum}
  .amdhsa_group_segment_fixed_size 0
  .amdhsa_kernarg_size 16
  .amdhsa_user_sgpr_count 2
  .amdhsa_user_sgpr_kernarg_segment_ptr 1
  .amdhsa_system_sgpr_workgroup_id_x 1
.end_amdhsa_kernel
"""

def run(name, body, init="", grid=256, block=256, iters=50, lds=0, vgpr=128, inbytes=1<<24, per=1, accum=None, unroll=16):
    body = (body.rstrip('\n')+'\n')*unroll
    per = per*unroll
    logblock = int(np.log2(block))
    outbytes = grid*block*4
    asm = TEMPLATE.format(grid=grid, block=block, lds=lds, outbytes=outbytes, inbytes=inbytes, init=init,
                          body=body, iters=iters, logblock=logblock, vgpr=vgpr, accum=accum or min(vgpr,256))
    full = with_harness_metadata(asm, "mb_kernel", 2)
    open("mb.s","w").write(full)
    r = subprocess.run(["clang","-x","assembler","-target","amdgcn-amd-amdhsa","-mcpu=gfx950","mb.s","-o","mb.co"],capture_output=True,text=True)
    if r.returncode:
        print(name, "ASM FAIL", r.stderr[:2000]); return
    if not os.path.exists('/dev/kfd'):
        print(name, "assembled"); return
    k = AsmKernel("mb.co","mb_kernel")
    out = DeviceBuffer(outbytes)
    rng = np.random.default_rng(0)
    inp = DeviceBuffer.from_numpy((rng.standard_normal(inbytes//4)*0.5).astype(np.float32))
    ka = pack_ptr_kernargs([out.ptr, inp.ptr])
    res=[]
    for rep in range(3):
        k.launch((grid,1,1),(block,1,1),ka,lds)
        _check(_hip.hipDeviceSynchronize())
        oo = out.to_numpy(np.uint32,(grid*block,)); o = oo[::64]; clk = o.max()/max(1,oo[1::64].max())/10
        res.append((np.median(o)/iters/per, o.min()/iters/per, o.max()/iters/per))
    print(f"{name:50s} block={block} grid={grid}: cyc/unit med={res[-1][0]:.2f} min={res[-1][1]:.2f} max={res[-1][2]:.2f}  thr/SIMD={res[-1][2]/max(1,block//256):.2f} clk={clk:.2f}GHz ns={res[-1][2]/max(1,block//256)/clk:.1f}")
    k.unload()
```

```python
from mb import run
s=[l for l in open('seg_p12.txt').read().split('\n') if l.strip() and not l.strip().endswith(':') and 'cbranch' not in l and 'exec' not in l]
init = "\n".join(f"    v_mov_b32 v{i}, 0" for i in range(3,256))+"""
    v_and_b32 v1, 63, v0
    v_lshlrev_b32 v2, 4, v1
    v_mov_b32 v8, v2
    v_mov_b32 v9, v2
    s_mov_b32 s74, 0
    s_mov_b32 s48, 0
"""
def body(drop=()):
    return "    s_barrier\n"+"\n".join(l.replace(" v0,"," v200,").replace(" v0 "," v200 ").replace(", v0\n",", v200\n") for l in s if not any(d in l for d in drop) and not l.endswith(" v0"))+"\n s_waitcnt lgkmcnt(0) vmcnt(0)\n v_mov_b32 v3, 0\n v_mov_b32 v4, 0\n v_mov_b32 v5, 0\n v_mov_b32 v200, 0\n"
kw=dict(block=512, per=1, vgpr=256, unroll=1, iters=10, lds=163840)
run("full", body(), init, **kw)
run("no vmem", body(("buffer_",)), init, **kw)
run("no valu", body(("v_add","v_fma","v_max","v_mul","v_and","v_lsh","v_mad","v_sub","v_rsq")), init, **kw)
run("no vmem/valu", body(("buffer_","v_add","v_fma","v_max","v_mul","v_and","v_lsh","v_mad","v_sub","v_rsq")), init, **kw)
```

```python
def mkinit(vpad=True, k2pad=True):
    init = "    v_lshlrev_b32 v2, 4, v0\n"
    for i in range(12,256,4):
        init += f"    s_mov_b32 s18, {i*8192}\n    buffer_load_dwordx4 v[{i}:{i+3}], v2, s[12:15], s18 offen\n"
    init += "    s_waitcnt vmcnt(0)\n    s_mov_b32 s30, 0x80ff80ff\n    s_mov_b32 s31, 0x3f003f00\n"
    for i in range(12,256):
        init += f"    v_and_b32 v{i}, s30, v{i}\n    v_or_b32 v{i}, s31, v{i}\n"
    if vpad:
        init += "    s_mov_b32 exec_lo, 0xffe00000\n    s_mov_b32 exec_hi, 0xffe00000\n"
        for i in range(176,240): init += f"    v_mov_b32 v{i}, 0\n"
        init += "    s_mov_b64 exec, -1\n"
    if k2pad:
        init += "    s_mov_b32 exec_lo, 0\n"
        for i in range(240,256,2): init += f"    v_mov_b32 v{i}, 0x3f803f80\n    v_mov_b32 v{i+1}, 0x3f80\n"
        init += "    s_mov_b64 exec, -1\n"
    return init
```

```python
from mb import run
from mb14lib import mkinit
vO=64; vP=24; Q=12
def body(mode):
    out=[]; E=out.append
    S=[32,48,96,112]
    for t in range(8):
        if mode=="2b":
            s=S[t%4]; sn=S[(t+2)%4]
        else:
            s=S[t&1]; sn=S[(t+1)&1]
        d=80
        K1=144+4*((t+1)%8); K2=240+2*((t+1)%8); V=176+8*t; Vp=176+8*((t-1)%8)
        def exps(a,b):
            for i in range(a,b): E(f"v_exp_f32 v{d+i}, v{s+i}")
        def cvts(p,a=0,b=4):
            for i in range(a,b): E(f"v_cvt_pk_bf16_f32 v{vP+4*p+i}, v{d+8*p+2*i}, v{d+8*p+2*i+1}")
        pv0=f"v_mfma_f32_32x32x16_bf16 v[{vO}:{vO+15}], v[{V}:{V+3}], v[{vP}:{vP+3}], v[{vO}:{vO+15}]"
        pv1=f"v_mfma_f32_32x32x16_bf16 v[{vO}:{vO+15}], v[{Vp+4}:{Vp+7}], v[{vP+4}:{vP+7}], v[{vO}:{vO+15}]"
        if mode=="base" or mode=="one":
            exps(0,3); E(pv1); exps(3,7); E(f"v_mfma_f32_32x32x16_bf16 v[{sn}:{sn+15}], v[{K1}:{K1+3}], v[{Q}:{Q+3}], 0")
            exps(7,8); cvts(0,0,3); exps(8,9); cvts(0,3,4)
            if mode=="base": E(f"v_mfma_f32_32x32x8_bf16 v[{sn}:{sn+15}], v[{K2}:{K2+1}], v[{Q+4}:{Q+5}], v[{sn}:{sn+15}]")
            exps(9,13); E(pv0); exps(13,16); cvts(1)
        else:
            if t%2==0:
                exps(0,2); E(pv1); exps(2,6); E(f"v_mfma_f32_32x32x4_2b_bf16 v[{sn}:{sn+31}], v[{K2+(0 if K2<250 else -8)-40}:{K2+(1 if K2<250 else -7)-40}], v[{Q+4}:{Q+5}], 0")
                exps(6,8); cvts(0); exps(8,13); E(pv0); exps(13,16); cvts(1)
            else:
                sp=S[(t+1)%4]
                exps(0,3); E(pv1); exps(3,7); E(f"v_mfma_f32_32x32x16_bf16 v[{sp}:{sp+15}], v[{K1}:{K1+3}], v[{Q}:{Q+3}], v[{sp}:{sp+15}]")
                exps(7,8); cvts(0,0,3); exps(8,9); cvts(0,3,4)
                E(f"v_mfma_f32_32x32x16_bf16 v[{sn}:{sn+15}], v[{K1-4}:{K1-1}], v[{Q}:{Q+3}], v[{sn}:{sn+15}]")
                exps(9,13); E(pv0); exps(13,16); cvts(1)
    return "\n".join("    "+x for x in out)
init=mkinit()
kw=dict(block=512, per=8, vgpr=256, unroll=2, iters=4)
for rep in range(3):
    for m in ("base","2b","one"): run(m, body(m), init, **kw)
```

```python
from mb import run
base = "\n".join(f"    v_mov_b32 v{i}, 0" for i in range(5,128))+"\n    v_and_b32 v1, 63, v0\n"
lin = base+" v_lshlrev_b32 v3, 3, v1\n v_add_u32 v4, 512, v3\n"
def pat(pitch, swz):
    return base+f"""
    v_lshrrev_b32 v10, 4, v1
    v_bfe_u32 v11, v1, 2, 2
    v_lshl_add_u32 v7, v10, 3, v11
    v_and_b32 v9, {swz}, v10
    v_lshl_add_u32 v3, v9, 2, v7
    v_xor_b32 v4, 4, v3
    v_and_b32 v9, 3, v1
    v_lshlrev_b32 v9, 3, v9
    s_movk_i32 s40, {pitch}
    v_mad_u32_u24 v3, v3, s40, v9
    v_mad_u32_u24 v4, v4, s40, v9
"""
def reads(n):
    return "\n".join(f"    ds_read_b64_tr_b16 v[{32+4*(i%12)}:{33+4*(i%12)}], v3 offset:{32*(i%5)+5120*(i//5)}\n    ds_read_b64_tr_b16 v[{34+4*(i%12)}:{35+4*(i%12)}], v4 offset:{32*(i%5)+5120*(i//5)}"+("\n    s_waitcnt lgkmcnt(8)" if i%2 else "") for i in range(n))
def gemm(n):
    s=""
    for i in range(n):
        if i%2==0: s+="    s_waitcnt lgkmcnt(10)\n"
        a=100+4*(i%5); r=32+4*(i%12); q=32+4*((i+7)%12)
        s+=f"    v_mfma_f32_16x16x32_bf16 v[{a}:{a+3}], v[{r}:{r+3}], v[80:83], v[{a}:{a+3}]\n"
        s+=f"    ds_read_b64_tr_b16 v[{q}:{q+1}], v3 offset:{32*(i%5)+5120*((i//5)%10)}\n    ds_read_b64_tr_b16 v[{q+2}:{q+3}], v4 offset:{32*(i%5)+5120*((i//5)%10)}\n"
    return s
def gemm128(n):
    s=""
    for i in range(n):
        if i%2==0: s+="    s_waitcnt lgkmcnt(5)\n"
        a=100+4*(i%5); r=32+4*(i%12); q=32+4*((i+7)%12)
        s+=f"    v_mfma_f32_16x16x32_bf16 v[{a}:{a+3}], v[{r}:{r+3}], v[80:83], v[{a}:{a+3}]\n"
        s+=f"    ds_read_b128 v[{q}:{q+3}], v2 offset:{1024*(i%50)}\n"
    return s
kw=dict(block=512, lds=65536, iters=10, unroll=2)
run("reads linear", reads(20), lin, per=40, **kw)
run("reads p160 swz", reads(20), pat(160,1), per=40, **kw)
run("reads p160 noswz", reads(20), pat(160,0), per=40, **kw)
run("gemm linear", gemm(60), lin, per=60, **kw)
run("gemm p160 swz", gemm(60), pat(160,1), per=60, **kw)
run("gemm b128", gemm128(60), base+" v_lshlrev_b32 v2, 4, v1\n", per=60, **kw)
```

```python
from mb import run
init = "\n".join(f"    v_mov_b32 v{i}, 0" for i in range(3,256))+"\n    v_and_b32 v1, 63, v0\n v_lshlrev_b32 v2, 4, v0\n v_mov_b32 v8, v2\n v_lshlrev_b32 v6, 3, v1\n v_mov_b32 v7, v6\n"
vS=[32,48]; vO=64; vP=24; Q=12; OB=[80,84,18]
def body(pk=True, bar_t=3, prio=None, bar=True, nvm=0):
    out=[]
    E=out.append
    for t in range(8):
        s,sn=vS[t&1],vS[(t+1)&1]
        K1=144+4*((t+1)%8); K2=240+2*((t+1)%8); V=176+8*t; Vp=176+8*((t-1)%8)
        def exps(a,b):
            for i in range(a,b): E(f"v_exp_f32 v{s+i}, v{s+i}")
        def cvts(p,a=0,b=4):
            for i in range(a,b): E(f"v_cvt_pk_bf16_f32 v{vP+4*p+i}, v{s+8*p+2*i}, v{s+8*p+2*i+1}")
        def qk1(): E(f"v_mfma_f32_32x32x16_bf16 v[{sn}:{sn+15}], v[{K1}:{K1+3}], v[{Q}:{Q+3}], 0")
        def qk2(): E(f"v_mfma_f32_32x32x8_bf16 v[{sn}:{sn+15}], v[{K2}:{K2+1}], v[{Q+4}:{Q+5}], v[{sn}:{sn+15}]")
        def pv0(): E(f"v_mfma_f32_32x32x16_bf16 v[{vO}:{vO+15}], v[{V}:{V+3}], v[{vP}:{vP+3}], "+("0" if t==0 else f"v[{vO}:{vO+15}]"))
        def pv1p(): E(f"v_mfma_f32_32x32x16_bf16 v[{vO}:{vO+15}], v[{Vp+4}:{Vp+7}], v[{vP+4}:{vP+7}], v[{vO}:{vO+15}]")
        def vm(k):
            if k<nvm: E(f"s_mov_b32 s18, {(t*3+k)*1024}"); E(f"buffer_load_dwordx4 v[{88+4*((t*3+k)%12)}:{91+4*((t*3+k)%12)}], v2, s[12:15], s18 offen")
        if prio and t in prio: E(f"s_setprio {prio[t]}")
        if t==bar_t:
            E("s_waitcnt lgkmcnt(0)")
            if bar: E("s_barrier")
            E("s_mul_i32 s40, s41, 3072"); E("v_add_u32 v8, s40, v2")
        exps(0,3); pv1p(); vm(0)
        if t==bar_t: E(f"ds_read_b128 v[{OB[0]}:{OB[0]+3}], v8")
        if t==1: E(f"ds_write_b128 v8, v[{OB[1]}:{OB[1]+3}] offset:8192")
        if t==7: E("s_waitcnt lgkmcnt(0)")
        exps(3,7); qk1(); vm(1)
        if t==bar_t: E(f"ds_read_b128 v[{OB[1]}:{OB[1]+3}], v8 offset:8192")
        if t==1: E(f"ds_write_b128 v8, v[{OB[2]}:{OB[2]+3}] offset:16384")
        if t==6: E(f"ds_read2_b64 v[{Q}:{Q+3}], v6 offset0:0 offset1:32")
        exps(7,8); cvts(0,0,3); exps(8,9); cvts(0,3,4); qk2()
        if t==bar_t: E(f"ds_read_b128 v[{OB[2]}:{OB[2]+3}], v8 offset:16384")
        if t==6: E(f"ds_read_b64 v[{Q+4}:{Q+5}], v7 offset:1024")
        if t==5: E("s_mul_i32 s40, s41, 1280"); E("v_add_u32 v6, s40, v9"); E("v_mad_u32_u24 v7, v11, s41, v10")
        exps(9,13)
        if t==0:
            for g in range(3):
                if pk:
                    for h in range(2): E(f"v_pk_add_f32 v[{OB[g]+2*h}:{OB[g]+2*h+1}], v[{OB[g]+2*h}:{OB[g]+2*h+1}], v[{vO+4*g+2*h}:{vO+4*g+2*h+1}]")
                else:
                    for h in range(4): E(f"v_add_f32 v{OB[g]+h}, v{OB[g]+h}, v{vO+4*g+h}")
        pv0(); vm(2)
        if t==0: E(f"ds_write_b128 v8, v[{OB[0]}:{OB[0]+3}]")
        exps(13,16); cvts(1)
    return "\n".join("    "+x for x in out)
init += " s_mov_b32 s41, 0\n s_mov_b32 m0, 0\n"
import re
kw=dict(block=512, per=1, vgpr=256, unroll=4, iters=5, lds=65536)
P={3:3,0:2,1:1,2:0}
b=body(prio=P)
def drop(b,*p): return "\n".join(l for l in b.split("\n") if not any(x in l for x in p))
run("base prio2", b, init, **kw)
run("noprio", body(), init, **kw)
run("no ds_write", drop(b,"ds_write"), init, **kw)
run("no ds_read128", drop(b,"ds_read_b128"), init, **kw)
run("no q reads", drop(b,"ds_read2","ds_read_b64"), init, **kw)
run("no pk", drop(b,"v_pk_add"), init, **kw)
run("no ds/pk", drop(b,"v_pk_add","ds_"), init, **kw)
run("no ds/pk/bar/wait", drop(b,"v_pk_add","ds_","s_barrier","s_waitcnt"), init, **kw)
def w64(m):
    lo=int(m.group(1)); off=int(m.group(3) or 0)
    return f"ds_write_b64 v8, v[{lo}:{lo+1}] offset:{off}\n    ds_write_b64 v8, v[{lo+2}:{lo+3}] offset:{off+8}"
run("write b64", re.sub(r"ds_write_b128 v8, v\[(\d+):(\d+)\](?: offset:(\d+))?", w64, b), init, **kw)
def wat(m):
    lo=int(m.group(1)); off=int(m.group(3) or 0)
    return "\n    ".join(f"ds_write_addtid_b32 v{lo+k} offset:{off+256*k}" for k in range(4))
run("write addtid", re.sub(r"ds_write_b128 v8, v\[(\d+):(\d+)\](?: offset:(\d+))?", wat, b), init, **kw)
```

```python
from mb import run
import re
s=[l for l in open('seg_pb.txt').read().split('\n') if l.strip()]
s=[re.sub(r"\bv0\b","v226",l).replace("s26,","s46,").replace("s27,","s47,") for l in s]
init = "\n".join(f"    v_mov_b32 v{i}, 0" for i in range(3,256))+"""
    v_and_b32 v1, 63, v0
    v_lshlrev_b32 v2, 4, v1
    v_mov_b32 v8, v2
    v_mov_b32 v9, v2
    v_lshrrev_b32 v3, 6, v0
    s_nop 1
    v_readfirstlane_b32 s48, v3
    s_lshr_b32 s74, s2, 5
    s_mul_i32 s74, s74, 245760
    s_mul_i32 s75, s48, 6144
    s_add_u32 s74, s74, s75
"""
VAL=("v_add","v_fma","v_max","v_mul","v_and","v_lsh","v_mad","v_sub","v_rsq")
def body(drop=()):
    return "    s_barrier\n"+"\n".join(l for l in s if not any(d in l for d in drop))+"\n v_mov_b32 v3, 0\n v_mov_b32 v4, 0\n v_mov_b32 v5, 0\n v_mov_b32 v226, 0\n"
kw=dict(block=512, per=1, vgpr=256, unroll=1, iters=10, lds=163840)
run("full", body(), init, **kw)
run("no vmem", body(("buffer_",)), init, **kw)
run("no valu", body(VAL), init, **kw)
run("no vmem/valu", body(VAL+("buffer_",)), init, **kw)
run("no vmem/valu/salu", body(VAL+("buffer_","s_add","s_mul","s_mov","s_xor","s_lsh")), init, **kw)
run("mfma only", body(VAL+("buffer_","s_","ds_")), init, **kw)
run("no x16", body(("16x16x16",)), init, **kw)
def pbody(fr):
    L=list(s); out=["    s_barrier"]
    pos={int(f*len(L)):p for f,p in fr}
    for i,l in enumerate(L):
        if i in pos: out.append(f"    s_setprio {pos[i]}")
        out.append(l)
    return "\n".join(out)+"\n v_mov_b32 v3, 0\n v_mov_b32 v4, 0\n v_mov_b32 v5, 0\n v_mov_b32 v226, 0\n"
run("prio quart", pbody([(0,3),(.25,2),(.5,1),(.75,0)]), init, **kw)
run("prio late", pbody([(0,3),(.55,2),(.75,1),(.9,0)]), init, **kw)
run("prio late2", pbody([(0,1),(.8,0)]), init, **kw)
def tog():
    out=["    s_barrier"];
    k=0
    for l in s:
        if "s_waitcnt" in l: out.append(f"    s_setprio {k&1}"); k+=1
        out.append(l)
    return "\n".join(out)+"\n v_mov_b32 v3, 0\n v_mov_b32 v4, 0\n v_mov_b32 v5, 0\n v_mov_b32 v226, 0\n"
run("prio toggle", tog(), init, **kw)
```
